```python
import torch

def _softmax(x, axis=-1):
    return torch.softmax(x, dim=axis)
def _gelu(x):
    return torch.nn.functional.gelu(x, approximate="tanh")
def _silu(x):
    return torch.nn.functional.silu(x)
def _sigmoid(x):
    return torch.sigmoid(x)
def _layernorm(x, axis=-1, eps=1e-5):
    m = x.mean(dim=axis, keepdim=True)
    v = x.var(dim=axis, keepdim=True, unbiased=False)
    return (x - m) / torch.sqrt(v + eps)
def _scatter_add(tgt, idx, src, axis=0):
    return tgt.clone().index_add_(axis, idx, src)
def _segment_sum(src, seg, n):
    out = torch.zeros((n,) + src.shape[1:], dtype=src.dtype)
    return out.index_add_(0, seg, src)
def _pad(x, pw):
    flat = tuple(v for pair in reversed(pw) for v in pair)
    return torch.nn.functional.pad(x, flat)

kernel_name = 'sequential_preLN__grouped_kv_mqa__dense_activation_relu__prompt'

def setup_inputs():

    _w = (lambda a: (lambda t: t.to(torch.bfloat16) if t.is_floating_point() else t)(torch.as_tensor(a)))
    def _A_setup():
        B, S, D, H = 1, 2048, 640, 32
        Dh = D // H
        return {
            "x": _w((lambda *s: torch.randn(*s, dtype=torch.bfloat16) * 0.05)(B, S, D)),
            "wq": _w((lambda *s: torch.randn(*s, dtype=torch.bfloat16) * 0.05)(D, H * Dh)),
            "wk": _w((lambda *s: torch.randn(*s, dtype=torch.bfloat16) * 0.05)(D, Dh)),
            "wv": _w((lambda *s: torch.randn(*s, dtype=torch.bfloat16) * 0.05)(D, Dh)),
            "wo": _w((lambda *s: torch.randn(*s, dtype=torch.bfloat16) * 0.05)(H * Dh, D)),
        }
    _A_in = _A_setup()

    def _B_setup():
        B, S, D, Dff = 1, 2048, 640, 1536
        return {
            "x": _w((lambda *s: torch.randn(*s, dtype=torch.bfloat16) * 0.05)(B, S, D)),
            "w1": _w((lambda *s: torch.randn(*s, dtype=torch.bfloat16) * 0.05)(D, Dff)),
            "w2": _w((lambda *s: torch.randn(*s, dtype=torch.bfloat16) * 0.05)(Dff, D)),
        }
    _B_in = _B_setup()

    return {
        "A_x": _A_in["x"],
        "A_wq": _A_in["wq"],
        "A_wk": _A_in["wk"],
        "A_wv": _A_in["wv"],
        "A_wo": _A_in["wo"],
        "B_x": _B_in["x"],
        "B_w1": _B_in["w1"],
        "B_w2": _B_in["w2"],
    }

def reference(A_x, A_wq, A_wk, A_wv, A_wo, B_x, B_w1, B_w2):
    def _A_ref(x, wq, wk, wv, wo):
        B, S, D = x.shape
        H = 32
        Dh = D // H
        q = (lambda x, *d: x.permute(*d))((x @ wq).reshape(B, S, H, Dh), 0, 2, 1, 3)
        k = x @ wk
        v = x @ wv
        scores = torch.einsum("bhqd,bkd->bhqk", q, k) * (Dh ** -0.5)
        p = _softmax(scores, axis=-1)
        o = torch.einsum("bhqk,bkd->bhqd", p, v)
        return (lambda x, *d: x.permute(*d))(o, 0, 2, 1, 3).reshape(B, S, H * Dh) @ wo

    def _B_ref(x, w1, w2):
        h = torch.einsum("bsd,df->bsf", x, w1)
        zero = torch.zeros_like(h)
        h = torch.maximum(h, zero)
        return torch.einsum("bsf,fd->bsd", h, w2)

    x = A_x
    h = x + _A_ref(_layernorm(x, axis=-1), A_wq, A_wk, A_wv, A_wo)
    h2 = h + _B_ref(_layernorm(h, axis=-1), B_w1, B_w2)
    return h2
```

```python
import re

TRANS = ("v_exp_f32", "v_log_f32", "v_rcp_f32", "v_rsq_f32", "v_sqrt_f32", "v_sin_f32", "v_cos_f32")

def parse_reg(tok):
    tok = tok.strip()
    tok = tok.lstrip("-")
    if tok.startswith("abs(") and tok.endswith(")"):
        tok = tok[4:-1]
    if tok.startswith("|") and tok.endswith("|"):
        tok = tok[1:-1]
    m = re.fullmatch(r"([vas])(\d+)", tok)
    if m:
        return {(m.group(1), int(m.group(2)))}
    m = re.fullmatch(r"([vas])\[(\d+):(\d+)\]", tok)
    if m:
        return {(m.group(1), i) for i in range(int(m.group(2)), int(m.group(3)) + 1)}
    if tok == "vcc":
        return {("s", 106), ("s", 107)}
    if tok == "vcc_lo":
        return {("s", 106)}
    if tok == "vcc_hi":
        return {("s", 107)}
    if tok == "exec":
        return {("s", 126), ("s", 127)}
    if tok == "exec_lo":
        return {("s", 126)}
    if tok == "exec_hi":
        return {("s", 127)}
    if tok == "m0":
        return {("s", 124)}
    return set()

def split_ops(s):
    out, depth, cur = [], 0, ""
    for ch in s:
        if ch in "[(":
            depth += 1
        if ch in "])":
            depth -= 1
        if ch == "," and depth == 0:
            out.append(cur.strip()); cur = ""
        else:
            cur += ch
    if cur.strip():
        out.append(cur.strip())
    return out

class Ins:
    __slots__ = ("text", "op", "w", "r", "kind", "passes", "srcc", "ab", "states", "dpp", "widestore", "lds_dma")
    def __init__(self, text):
        self.text = text
        parts = text.split(None, 1)
        op = parts[0]
        self.op = op
        rest = parts[1] if len(parts) > 1 else ""
        ops = split_ops(rest)
        toks = []
        for o in ops:
            toks.append(o.split()[0] if o.split() else o)
        self.w, self.r = set(), set()
        self.kind = "other"; self.passes = 0; self.srcc = set(); self.ab = set()
        self.states = 1; self.dpp = False; self.widestore = set(); self.lds_dma = False
        R = [parse_reg(t) for t in toks]
        if op == "s_nop":
            self.states = int(toks[0], 0) + 1
            self.kind = "nop"
        elif op.startswith("v_mfma"):
            self.kind = "mfma"
            self.passes = 8 if "32x32" in op else 4
            self.w = R[0]; self.ab = R[1] | R[2]; self.srcc = R[3]; self.r = self.ab | self.srcc
        elif op.startswith("v_"):
            self.kind = "valu"
            self.dpp = "_dpp" in op
            if op.startswith("v_cmp"):
                self.w = R[0]; self.r = set().union(*R[1:])
                if op.startswith("v_cmpx"):
                    self.w |= parse_reg("exec")
            elif op.startswith("v_permlane") and "swap" in op:
                self.w = R[0] | R[1]; self.r = R[0] | R[1]
            elif op.startswith(("v_add_co", "v_sub_co", "v_addc_co", "v_subb_co")):
                self.w = R[0] | R[1]; self.r = set().union(*R[2:])
            else:
                self.w = R[0]; self.r = set().union(*R[1:]) if len(R) > 1 else set()
                if op.startswith(("v_fmac", "v_dot2c", "v_pk_fmac")) or "_dpp" in op or "sdwa" in op:
                    self.r |= R[0]
                if op.startswith("v_cndmask") and len(R) == 3:
                    self.r |= parse_reg("vcc")
        elif op.startswith("buffer_") or op.startswith("global_"):
            self.kind = "vmem"
            if " lds" in (" " + rest) and "load" in op:
                self.lds_dma = True
                self.r = set().union(*R) | parse_reg("m0")
            elif "load" in op:
                self.w = R[0]; self.r = set().union(*R[1:])
            elif "store" in op or "atomic" in op:
                self.r = set().union(*R)
                if "x3" in op or "x4" in op:
                    self.widestore = R[0] if op.startswith("buffer_") else R[1]
            else:
                pass
        elif op.startswith("ds_"):
            self.kind = "ds"
            if op.startswith(("ds_read", "ds_bpermute", "ds_permute", "ds_swizzle")):
                self.w = R[0]; self.r = set().union(*R[1:])
            else:
                self.r = set().union(*R)
        elif op.startswith("s_"):
            self.kind = "salu"
            if op.startswith(("s_cmp", "s_cbranch", "s_branch", "s_waitcnt", "s_barrier", "s_endpgm", "s_setprio", "s_sleep", "s_bitcmp")):
                self.r = set().union(*R) if R else set()
            else:
                self.w = R[0] if R else set(); self.r = set().union(*R[1:]) if len(R) > 1 else set()
                if "saveexec" in op:
                    self.w |= parse_reg("exec")

def vg(s):
    return {x for x in s if x[0] != "s"}
def sg(s):
    return {x for x in s if x[0] == "s"}

def need(p, c):
    n = 0
    if p.kind == "valu":
        pw = vg(p.w); ps = sg(p.w)
        isdot = p.op.startswith("v_dot")
        if c.kind == "mfma" and pw & c.r:
            n = max(n, 3 if isdot else 2)
        if c.kind == "valu":
            if p.op.replace("_e32", "").replace("_e64", "") in TRANS and pw & c.r and c.op.replace("_e32", "").replace("_e64", "") not in TRANS:
                n = max(n, 1)
            if c.op.startswith("v_permlane") and pw & c.r:
                n = max(n, 2)
            if c.dpp and pw & c.r:
                n = max(n, 2)
            if c.op.startswith(("v_readfirstlane", "v_readlane")) and pw & c.r:
                n = max(n, 1)
            if ps & c.r:
                n = max(n, 4 if c.op.startswith(("v_readlane", "v_writelane")) else 2)
            if isdot and (pw & (c.r | c.w)):
                if not (c.op == p.op and (pw & c.w) and not (pw & (c.r - c.w))):
                    n = max(n, 3)
            if ("sdwa" in p.op or "op_sel" in p.text) and pw & (c.r | c.w):
                n = max(n, 1)
            if ("s", 126) in p.w:
                if c.dpp: n = max(n, 5)
                if c.op.startswith(("v_readlane", "v_readfirstlane", "v_writelane", "v_permlane")): n = max(n, 4)
        if isdot and c.kind in ("vmem", "ds") and pw & c.r:
            n = max(n, 3)
        if c.kind == "vmem" and ps & c.r:
            n = max(n, 5)
        if c.kind == "salu" and ps & c.r:
            n = max(n, 1)
        if c.kind == "mfma" and ("s", 126) in p.w:
            n = max(n, 4)
    elif p.kind == "mfma":
        big = 12 if p.passes == 8 else 8
        if c.kind == "mfma":
            if p.w & c.ab:
                n = max(n, big)
            if p.w & c.srcc:
                if not (p.w == c.srcc and p.passes == c.passes):
                    n = max(n, 10 if p.passes == 8 else 6)
        elif c.kind in ("valu", "vmem", "ds"):
            if p.w & (c.r | c.w):
                n = max(n, big)
            if c.kind == "valu" and p.srcc & c.w:
                n = max(n, 7 if p.passes == 8 else 3)
    elif p.kind == "vmem":
        if p.widestore and c.kind in ("valu", "mfma") and p.widestore & c.w:
            n = max(n, 2)
        elif p.widestore and p.widestore & c.w:
            n = max(n, 1)
    elif p.kind == "salu":
        if ("s", 124) in p.w and c.lds_dma:
            n = max(n, 1)
    return n

class Asm:
    def __init__(self):
        self.lines = []
        self.hist = []
        self.nops = 0
        self.uid = 0
    def raw(self, s):
        self.lines.append(s)
    def c(self, s):
        self.lines.append("    ; " + s)
    def label(self, name):
        self.lines.append(name + ":")
    def newlabel(self, base):
        self.uid += 1
        return f"L_{base}_{self.uid}"
    def pad_needed(self, ins):
        dist = 0; req = 0
        for p in reversed(self.hist):
            n = need(p, ins)
            if n > dist:
                req = max(req, n - dist)
            dist += p.states
            if dist >= 12:
                break
        return req
    def i(self, text):
        for t in text.strip().split("\n"):
            t = t.split(";")[0].strip()
            if not t:
                continue
            if t.endswith(":"):
                self.label(t[:-1]); continue
            ins = Ins(t)
            req = self.pad_needed(ins)
            if req > 0:
                nop = Ins(f"s_nop {req-1}")
                self.lines.append("    " + nop.text)
                self.hist.append(nop); self.nops += 1
            self.lines.append("    " + t)
            self.hist.append(ins)
            if len(self.hist) > 40:
                self.hist = self.hist[-24:]
    def flush(self, n=12):
        dist = 0; req = 0
        for p in reversed(self.hist):
            if p.kind == "mfma":
                req = max(req, (12 if p.passes == 8 else 8) - dist)
            elif p.kind == "valu":
                req = max(req, (5 if sg(p.w) else 3) - dist)
            elif p.kind == "vmem" and p.widestore:
                req = max(req, 2 - dist)
            elif p.kind == "salu" and ("s", 124) in p.w:
                req = max(req, 1 - dist)
            dist += p.states
            if dist >= 12:
                break
        if req > 0:
            self.i(f"s_nop {req-1}")
    def text(self):
        return "\n".join(self.lines) + "\n"

def v(a, n=1):
    return f"v{a}" if n == 1 else f"v[{a}:{a+n-1}]"
def a_(a, n=1):
    return f"a{a}" if n == 1 else f"a[{a}:{a+n-1}]"
def s_(a, n=1):
    return f"s{a}" if n == 1 else f"s[{a}:{a+n-1}]"
```

```python
import sys, math, struct
from asmlib import *

NAME = "sequential_preLN__grouped_kv_mqa__dense_activation_relu__prompt"
KNAME = NAME + "_kernel"

def f32(x):
    return "0x%08x" % struct.unpack("<I", struct.pack("<f", x))[0]

FL1, FL2, FL3 = 0x0, 0x4000, 0x10000
KVI = 0x30000
WTO, WT1, WT2 = 0x100000, 0x200000, 0x400000
OX, HX, FX = 0x600000, 0x900000, 0xC00000
PROF = 0x1400000
WS_SIZE = 0x1800000
OXG, HXG, FXG = 80 * 1024, 88 * 1024, 192 * 1024
REC = 2624
K2_OFF, V1_OFF, V2_OFF = 1024, 1280, 1952
RINGSZ = 16 * REC
XROW, XSEG = 272, 64 * 272
L_WQ = 5 * XSEG
L_WK = L_WQ + 40960
L_MISC = 153600
L_MEAN, L_RSTD, L_CS, L_VOTE = L_MISC, L_MISC + 256, L_MISC + 512, L_MISC + 1536
L_RING = 102400
L_P3X = 102400
L_CSX = L_P3X + 24576
L_F1X = 102400
L_HST = 81920
TROW = 144

sX, sWQ, sWKV, sTW, sOUT, sDBG, sWS = 8, 12, 16, 20, 24, 28, 32
sG, sM, sW = 36, 37, 38
sFIN = 39
sT = 40
sONES = 42
sTB = 43
sKH, sR = 44, 45
sA, sB, sC, sD, sE, sF = 70, 71, 72, 73, 74, 75
sKVO, sKVM = 76, 77
sWOFF = 78
sSPIN = 79
sTR = 80
sTRS, sTSO, sTDST, sTNS = 86, 87, 88, 89
sEX = 90
sPT = 92

STAMP_REGS = [46, 47, 94, 95, 96, 97, 98, 99, 100, 101] + list(range(48, 70))
ONES2 = 0x3F803F80
QSCALE = (20 ** -0.5) * math.log2(math.e)
MLIM = 40.0

class VM:
    def __init__(self, A):
        self.A = A; self.ops = []
    def issue(self, text, tag=None, counted=True):
        self.A.i(text)
        if counted:
            self.ops.append(tag)
    def mark(self, tag):
        self.ops[-1] = tag
    def n_after(self, tag):
        idx = max(i for i, t in enumerate(self.ops) if t == tag)
        return len(self.ops) - 1 - idx
    def wait(self, tag, extra=""):
        n = min(self.n_after(tag), 63)
        self.A.i(f"s_waitcnt vmcnt({n}){extra}")
    def drain(self):
        self.A.i("s_waitcnt vmcnt(0)")
        self.ops = []

def rowconsts(typ):
    out = []
    ns = 6 if typ == "w2" else 5
    for s in range(6):
        Aa, Bb = [], []
        for g in range(4):
            if s >= ns:
                a = b = 0
            elif typ == "wo":
                if s < 4:
                    mm, p = s >> 1, s & 1
                    a = 80 * mm + 20 * (2 * p + (g >> 1)) + 4 * (g & 1); b = a + 8
                else:
                    a = 80 * (g >> 1) + 40 * (g & 1) + 16; b = a + 20
            elif typ == "w1":
                if s < 4:
                    mm, p = s >> 1, s & 1
                    a = 80 * mm + 32 * p + 4 * g; b = a + 16
                else:
                    a = 80 * (g >> 1) + 64 + 8 * (g & 1); b = a + 4
            else:
                if s < 4:
                    a = 48 * s + 4 * g; b = a + 16
                else:
                    c = 2 * (s - 4) + (g >> 1)
                    a = 48 * c + 32 + 8 * (g & 1); b = a + 4
            Aa.append(a); Bb.append(b)
        pk = lambda L: sum(x << (8 * i) for i, x in enumerate(L))
        out.append((pk(Aa), pk(Bb)))
    return out

class Gen:
    def __init__(self, prof=False, force_slow=False, stop_after=None):
        self.A = Asm(); self.vm = VM(self.A)
        self.prof = prof; self.force_slow = force_slow; self.stop_after = stop_after
        self.nstamp = 0

    def srd(self, d, lo, size):
        self.A.i(f"s_mov_b32 s{d}, s{lo}\n s_mov_b32 s{d+1}, s{lo+1}\n s_mov_b32 s{d+2}, {size}\n s_mov_b32 s{d+3}, 0x00020000")

    def stamp(self, name):
        if not self.prof:
            return
        A = self.A
        idx = self.nstamp; self.nstamp += 1
        A.c(f"stamp {idx} {name}")
        A.i(f"s_memtime s[{sPT}:{sPT+1}]\n s_waitcnt lgkmcnt(0)")
        A.i(f"s_mov_b32 s{STAMP_REGS[idx]}, s{sPT}")
        print(f"stamp {idx}: {name}", file=sys.stderr)

    def poll(self, addr_v, data_v, n, tmp_label="poll"):
        A = self.A
        L = A.newlabel(tmp_label); Ld = A.newlabel(tmp_label + "d")
        A.i(f"s_mov_b32 s{sSPIN}, 0x20000")
        A.label(L)
        A.i(f"buffer_load_dwordx{n} {v(data_v, n)}, v{addr_v}, s[{sWS}:{sWS+3}], 0 offen sc1")
        A.i(f"s_sub_u32 s{sSPIN}, s{sSPIN}, 1")
        A.i(f"s_cbranch_scc1 {Ld}")
        A.i("s_waitcnt vmcnt(0)")
        A.i(f"v_cmp_ne_u64 vcc, s[{sT}:{sT+1}], {v(data_v, 2)}")
        A.i(f"s_cbranch_vccnz {L}")
        A.label(Ld)
        self.vm.ops = []

    def flag_store(self, base, idx_s, extra=None, tmpv=120):
        A = self.A
        A.i(f"s_lshl_b32 s{sA}, s{idx_s}, 7\n s_add_u32 s{sA}, s{sA}, {base}")
        A.i(f"v_mov_b32 v{tmpv}, s{sT}\n v_mov_b32 v{tmpv+1}, s{sT+1}")
        if extra is None:
            A.i(f"v_mov_b32 v{tmpv+2}, 0")
        elif extra != f"v{tmpv+2}":
            A.i(f"v_mov_b32 v{tmpv+2}, {extra}")
        A.i(f"v_mov_b32 v{tmpv+3}, 0")
        A.i("s_mov_b64 exec, 1")
        A.i(f"buffer_store_dwordx4 {v(tmpv,4)}, off, s[{sWS}:{sWS+3}], s{sA} sc1")
        A.i("s_mov_b64 exec, -1")

    def halves_sum(self, x, t):
        self.A.i(f"v_mov_b32 v{t}, v{x}\n v_permlane32_swap_b32 v{x}, v{t}\n v_add_f32 v{x}, v{x}, v{t}")

    def rows_op(self, op, x, t):
        A = self.A
        A.i(f"v_mov_b32 v{t}, v{x}\n v_permlane32_swap_b32 v{x}, v{t}\n {op} v{x}, v{x}, v{t}")
        A.i(f"v_mov_b32 v{t}, v{x}\n v_permlane16_swap_b32 v{x}, v{t}\n {op} v{x}, v{x}, v{t}")

    def row16_op(self, op, x):
        for r in (8, 4, 2, 1):
            self.A.i(f"{op}_dpp v{x}, v{x}, v{x} row_ror:{r} row_mask:0xf bank_mask:0xf")

    def header(self):
        A = self.A
        A.raw(f"; @launch grid=(256,1,1) block=(512,1,1) lds=163840")
        A.raw('.amdgcn_target "amdgcn-amd-amdhsa--gfx950"\n.text')
        A.raw(f".globl {KNAME}\n.p2align 8\n.type {KNAME},@function")
        A.label(KNAME)

    def footer(self):
        A = self.A
        A.label("L_end")
        A.i("s_endpgm")
        A.label("L_code_end")
        A.raw(f""".section .rodata,"a"
.p2align 6
.amdhsa_kernel {KNAME}
  .amdhsa_next_free_vgpr 256
  .amdhsa_next_free_sgpr 102
  .amdhsa_accum_offset 128
  .amdhsa_group_segment_fixed_size 0
  .amdhsa_kernarg_size 88
  .amdhsa_user_sgpr_count 2
  .amdhsa_user_sgpr_kernarg_segment_ptr 1
  .amdhsa_system_sgpr_workgroup_id_x 1
.end_amdhsa_kernel""")

    def loads2(self):
        A, vm = self.A, self.vm
        for i in range(5):
            A.i(f"s_lshl_b32 s{sA}, s{sW}, 10\n s_add_u32 m0, s{sA}, {L_WQ + i*8192}")
            vm.issue(f"buffer_load_dwordx4 v{72+i}, s[{sWQ}:{sWQ+3}], 0 offen lds", "wq1")
        A.i(f"s_mov_b32 s{sA}, {256*1280}\n s_mov_b32 s{sB}, {512*1280}")
        for i in range(8):
            vm.issue(f"buffer_load_dwordx4 {a_(4*i,4)}, v{72+(i%5)}, s[{sWQ}:{sWQ+3}], s{sA if i < 5 else sB} offen", "wq2")
        A.i(f"s_lshl_b32 s{sA}, s{sTRS}, 6\n s_add_u32 s{sB}, s{sTSO}, s{sA}\n s_add_u32 s{sC}, s{sB}, s{sA}")
        for i, so in enumerate((sTSO, sB, sC)):
            vm.issue(f"buffer_load_dwordx4 {a_(32+4*i,4)}, v79, s[{sTW}:{sTW+3}], s{so} offen", "raw")

    def phase1(self):
        A, vm = self.A, self.vm
        A.i("s_cmp_ge_u32 s2, 256\n s_cbranch_scc1 L_end")
        A.i("s_load_dwordx16 s[48:63], s[0:1], 0\n s_load_dwordx4 s[64:67], s[0:1], 64\n s_load_dwordx2 s[68:69], s[0:1], 80")
        A.i(f"v_lshrrev_b32 v2, 6, v0\n v_and_b32 v0, 63, v0\n v_readfirstlane_b32 s{sW}, v2\n v_lshlrev_b32 v1, 4, v0")
        A.i(f"s_and_b32 s{sG}, s2, 7\n s_lshl_b32 s{sG}, s{sG}, 2\n s_lshr_b32 s{sA}, s2, 6\n s_add_u32 s{sG}, s{sG}, s{sA}")
        A.i(f"s_lshr_b32 s{sM}, s2, 3\n s_and_b32 s{sM}, s{sM}, 7")
        A.i(f"s_mov_b32 s{sONES}, 0x{ONES2:08x}")
        A.i(f"s_lshr_b32 s{sKH}, s{sW}, 2\n s_and_b32 s{sR}, s{sW}, 3")
        A.i(f"s_lshr_b32 s{sA}, s{sM}, 2\n s_or_b32 s{sA}, s{sA}, s{sW}\n s_cmp_eq_u32 s{sA}, 0\n s_cselect_b32 s{sFIN}, 1, 0")
        A.i("v_lshrrev_b32 v80, 4, v0\n v_and_b32 v81, 15, v0\n v_lshlrev_b32 v82, 4, v81")
        A.i("v_mul_u32_u24 v77, 1280, v80\n v_add_u32 v77, v77, v82")
        A.i(f"s_add_u32 s{sB}, s{sW}, s{sM}\n s_and_b32 s{sB}, s{sB}, 7\n s_lshl_b32 s{sB}, s{sB}, 3")
        A.i(f"v_add_u32 v83, s{sB}, v80")
        A.i(f"v_mul_u32_u24 v78, {XROW}, v83\n v_add_u32 v78, v78, v82\n v_add_u32 v84, {2*XSEG}, v78")
        A.i(f"v_lshlrev_b32 v83, 2, v83\n v_add_u32 v83, {L_MEAN}, v83")
        A.i(f"s_lshl_b32 s{sC}, s{sG}, 6\n s_add_u32 s{sC}, s{sC}, s{sB}\n s_mul_i32 s{sC}, s{sC}, 1280\n s_add_u32 s{sD}, s{sC}, 5120")
        A.i(f"s_lshl_b32 s{sTB}, s{sG}, 2\n s_and_b32 s{sA}, s{sM}, 3\n s_add_u32 s{sTB}, s{sTB}, s{sA}")
        A.i(f"s_cmp_lt_u32 s{sM}, 4\n s_cselect_b32 s{sA}, 128, 0\n s_add_u32 s{sTB}, s{sTB}, s{sA}")
        A.i("s_waitcnt lgkmcnt(0)")
        self.srd(sX, 48, 2048 * 1280)
        self.srd(sWS, 68, WS_SIZE)
        self.srd(sDBG, 66, 256)
        A.i(f"s_bitcmp1_b32 s{sM}, 0\n s_cselect_b32 s{sWKV}, s54, s52\n s_cselect_b32 s{sWKV+1}, s55, s53\n s_mov_b32 s{sWKV+2}, 25600\n s_mov_b32 s{sWKV+3}, 0x00020000")
        self.stamp("start")
        A.i(f"s_or_b32 s{sA}, s2, s{sW}\n s_cmp_lg_u32 s{sA}, 0\n s_cbranch_scc1 L_notok")
        A.i(f"s_memrealtime s[{sT}:{sT+1}]\n s_waitcnt lgkmcnt(0)\n s_or_b32 s{sT}, s{sT}, 1\n s_or_b32 s{sT+1}, s{sT+1}, 0x40000000")
        A.i(f"v_mov_b32 v86, s{sT}\n v_mov_b32 v87, s{sT+1}\n s_mov_b64 exec, 1")
        A.i(f"buffer_store_dwordx2 v[86:87], off, s[{sDBG}:{sDBG+3}], 0 sc1\n s_mov_b64 exec, -1")
        A.label("L_notok")
        A.i(f"s_cmp_ge_u32 s{sM}, 4\n s_cbranch_scc1 L_nowk")
        A.i(f"s_lshl_b32 s{sA}, s{sW}, 10")
        for i in range(3):
            A.i(f"s_add_u32 m0, s{sA}, {L_WK}")
            A.i(f"buffer_load_dwordx4 v1, s[{sWKV}:{sWKV+3}], s{sA} offen lds")
            A.i(f"s_add_u32 s{sA}, s{sA}, 8192")
        A.i(f"s_cmp_lg_u32 s{sW}, 0\n s_cbranch_scc1 L_nowk")
        A.i(f"s_add_u32 m0, s{sA}, {L_WK}")
        A.i(f"buffer_load_dwordx4 v1, s[{sWKV}:{sWKV+3}], s{sA} offen lds")
        A.label("L_nowk")
        vm.ops.append("wk")
        for b in range(2):
            for sgm in range(5):
                vm.issue(f"buffer_load_dwordx4 {v(32+20*b+4*sgm,4)}, v77, s[{sX}:{sX+3}], s{sC if b == 0 else sD} offen offset:{sgm*256}", f"x{b}")
        self.srd(sWQ, 50, 640 * 1280)
        self.srd(sOUT, 64, 2048 * 1280)
        A.i(f"s_mul_i32 s{sE}, s{sM}, 160\n s_lshl_b32 s{sA}, s{sW}, 6")
        for i in range(5):
            A.i(f"s_add_u32 s{sB}, s{sA}, {i*512}\n v_add_u32 v86, s{sB}, v0")
            A.i("v_mul_u32_u24 v87, 52429, v86\n v_lshrrev_b32 v87, 19, v87")
            A.i("v_mul_u32_u24 v88, 1120, v87\n v_lshlrev_b32 v86, 4, v86")
            A.i(f"v_add3_u32 v{72+i}, v86, v88, s{sE}")
        Lw2, Lwo, Ljoin = "L_tw2", "L_two", "L_tjoin"
        A.i(f"s_cmp_ge_u32 s{sTB}, 96\n s_cbranch_scc1 {Lw2}")
        def tparams(typ, ptr, size, rs, R, ncb, tb0, base, nks, ns):
            self.srd(sTW, ptr, size)
            magic = (1 << 16) // ncb + 1
            A.i(f"s_sub_u32 s{sA}, s{sTB}, {tb0}\n s_mul_i32 s{sB}, s{sA}, {magic}\n s_lshr_b32 s{sB}, s{sB}, 16")
            A.i(f"s_mul_i32 s{sF}, s{sB}, {ncb}\n s_sub_u32 s{sA}, s{sA}, s{sF}")
            A.i(f"s_mov_b32 s{sTRS}, {rs}\n s_mov_b32 s{sTNS}, {ns}")
            A.i(f"s_mul_i32 s{sTSO}, s{sB}, {R*rs}\n s_lshl_b32 s{sF}, s{sA}, 7\n s_add_u32 s{sTSO}, s{sTSO}, s{sF}")
            A.i(f"s_lshl_b32 s{sA}, s{sA}, 2\n s_add_u32 s{sA}, s{sA}, s{sR}\n s_mul_i32 s{sA}, s{sA}, {nks}\n s_mul_i32 s{sB}, s{sB}, {ns}")
            A.i(f"s_add_u32 s{sA}, s{sA}, s{sB}\n s_add_u32 s{sA}, s{sA}, s{sKH}\n s_lshl_b32 s{sA}, s{sA}, 10\n s_add_u32 s{sTDST}, s{sA}, {base}")
            rc = rowconsts(typ)
            A.i(f"s_cmp_eq_u32 s{sKH}, 0")
            for e in range(3):
                for hf in range(2):
                    A.i(f"s_mov_b32 s{sF}, 0x{rc[2*e+1][hf]:08x}\n s_cselect_b32 s{sTR+2*e+hf}, 0x{rc[2*e][hf]:08x}, s{sF}")
        tparams("w1", 60, 640 * 3072, 3072, 160, 24, 0, WT1, 20, 5)
        A.i(f"s_branch {Ljoin}")
        A.label(Lw2)
        A.i(f"s_cmp_ge_u32 s{sTB}, 176\n s_cbranch_scc1 {Lwo}")
        tparams("w2", 62, 1536 * 1280, 1280, 192, 10, 96, WT2, 48, 6)
        A.i(f"s_branch {Ljoin}")
        A.label(Lwo)
        tparams("wo", 56, 640 * 1280, 1280, 160, 10, 176, WTO, 20, 5)
        A.label(Ljoin)
        A.i(f"v_lshrrev_b32 v86, 3, v0\n s_lshl_b32 s{sA}, s{sW}, 3\n v_add_u32 v86, s{sA}, v86\n v_and_b32 v87, 7, v0\n v_lshlrev_b32 v87, 4, v87")
        A.i(f"v_mul_lo_u32 v79, v86, s{sTRS}\n v_add_u32 v79, v79, v87")
        A.i(f"v_mul_u32_u24 v85, {TROW}, v86\n v_add_u32 v85, v85, v87")
        A.i(f"s_cmp_lg_u32 s{sW}, 7\n s_cbranch_scc1 L_nowarm")
        A.i(f"s_getpc_b64 s[{sEX}:{sEX+1}]")
        A.label("L_pc0")
        A.i(f"s_lshr_b32 s{sA}, s2, 3\n s_lshl_b32 s{sA}, s{sA}, 11\n v_lshlrev_b32 v86, 5, v0\n v_add_u32 v86, s{sA}, v86")
        A.i("v_min_u32 v86, L_code_end-L_pc0-4, v86")
        A.i(f"v_mov_b32 v87, s{sEX+1}\n v_add_co_u32 v86, vcc, s{sEX}, v86\n v_addc_co_u32 v87, vcc, 0, v87, vcc")
        A.i("global_load_dword v127, v[86:87], off")
        A.label("L_nowarm")
        vm.issue(f"buffer_load_dwordx2 v[90:91], off, s[{sDBG}:{sDBG+3}], 0 sc1", "tok")
        A.i(f"s_cmp_lg_u32 s{sFIN}, 0\n s_cbranch_scc1 L_skipl2")
        n0 = len(vm.ops)
        self.loads2()
        NL2 = len(vm.ops) - n0
        A.label("L_skipl2")
        def wait2(tag):
            n = vm.n_after(tag)
            L = A.newlabel("w2")
            A.i(f"s_waitcnt vmcnt({n})\n s_cmp_eq_u32 s{sFIN}, 0\n s_cbranch_scc1 {L}\n s_waitcnt vmcnt({n-NL2})")
            A.label(L)
        A.i("v_lshrrev_b32 v86, 5, v0\n v_lshlrev_b32 v92, 3, v86\n v_bfe_u32 v87, v0, 2, 2\n v_add_u32 v92, v92, v87")
        A.i("v_and_b32 v93, 3, v0\n v_and_b32 v87, 16, v0\n v_cmp_ne_u32 vcc, 0, v87\n v_cndmask_b32 v93, v93, 4, vcc\n v_lshlrev_b32 v93, 3, v93")
        A.i(f"v_and_b32 v87, 31, v0\n v_mul_u32_u24 v94, {XROW}, v87\n v_lshlrev_b32 v86, 4, v86\n v_add_u32 v94, v94, v86")
        A.i(f"s_cmp_ge_u32 s{sM}, 4\n s_cbranch_scc1 L_nojobA")
        wait2("wk")
        A.i("s_barrier")
        A.i(f"s_cmp_ge_u32 s{sW}, 4\n s_cbranch_scc1 L_nojobA")
        A.i(f"v_mul_u32_u24 v86, 40, v92\n v_add_u32 v86, v86, v93\n s_mul_i32 s{sA}, s{sW}, 6400\n s_add_u32 s{sA}, s{sA}, {L_WK}\n v_add_u32 v86, s{sA}, v86")
        for s in range(10):
            A.i(f"ds_read_b64_tr_b16 {a_(48+4*s,2)}, v86 offset:{s*640}")
            A.i(f"ds_read_b64_tr_b16 {a_(50+4*s,2)}, v86 offset:{s*640+160}")
        for j in range(4):
            A.i(f"v_mov_b32 v{112+j}, s{sONES}")
        A.i("s_waitcnt lgkmcnt(0)")
        A.i(f"s_bitcmp1_b32 s{sM}, 0\n s_cbranch_scc1 L_csV")
        for s in range(10):
            A.i(f"v_mfma_f32_32x32x16_bf16 v[96:111], {a_(48+4*s,4)}, v[112:115], {'0' if s == 0 else 'v[96:111]'}")
        A.i("s_branch L_nojobA")
        A.label("L_csV")
        for s in range(10):
            A.i(f"v_mfma_f32_32x32x16_bf16 v[96:111], v[112:115], {a_(48+4*s,4)}, {'0' if s == 0 else 'v[96:111]'}")
        A.label("L_nojobA")
        for b in range(2):
            wait2(f"x{b}")
            for sgm in range(5):
                base, off = (78, sgm * XSEG) if sgm < 2 else (84, (sgm - 2) * XSEG)
                A.i(f"ds_write_b128 v{base}, {v(32+20*b+4*sgm,4)} offset:{off + b*4*XROW}")
            A.i("v_mov_b32 v86, 0\n v_mov_b32 v87, 0\n v_mov_b32 v88, 0\n v_mov_b32 v89, 0")
            for j in range(20):
                r = 32 + 20 * b + j
                A.i(f"v_dot2c_f32_bf16 v{86+(j&1)}, s{sONES}, v{r}")
                A.i(f"v_dot2c_f32_bf16 v{88+(j&1)}, v{r}, v{r}")
            A.i("v_add_f32 v86, v86, v87\n v_add_f32 v88, v88, v89")
            for r in (8, 4, 2, 1):
                A.i(f"v_add_f32_dpp v86, v86, v86 row_ror:{r} row_mask:0xf bank_mask:0xf")
                A.i(f"v_add_f32_dpp v88, v88, v88 row_ror:{r} row_mask:0xf bank_mask:0xf")
            A.i(f"v_mul_f32 v86, {f32(1/640)}, v86\n v_mul_f32 v88, {f32(1/640)}, v88")
            A.i(f"v_fma_f32 v88, -v86, v86, v88\n v_max_f32 v88, 0, v88\n v_add_f32 v88, {f32(1e-5)}, v88\n v_rsq_f32 v88, v88")
            A.i(f"ds_write_b32 v83, v86 offset:{16*b}\n ds_write_b32 v83, v88 offset:{256+16*b}")
        A.i("s_waitcnt lgkmcnt(0)\n s_barrier")
        self.stamp("x in lds")
        A.i(f"s_cmp_ge_u32 s{sM}, 4\n s_cbranch_scc1 L_nojobB")
        A.i(f"s_cmp_ge_u32 s{sW}, 4\n s_cbranch_scc1 L_jobbar")
        A.i(f"s_lshr_b32 s{sA}, s{sM}, 1\n s_mul_i32 s{sB}, s{sA}, {32*XROW}\n v_add_u32 v86, s{sB}, v94\n s_mul_i32 s{sC}, s{sW}, 10")
        for s in range(10):
            A.i(f"s_add_u32 s{sD}, s{sC}, {s}\n s_lshr_b32 s{sE}, s{sD}, 3\n s_mul_i32 s{sE}, s{sE}, {XSEG}\n s_and_b32 s{sD}, s{sD}, 7\n s_lshl_b32 s{sD}, s{sD}, 5\n s_add_u32 s{sD}, s{sD}, s{sE}")
            A.i(f"v_add_u32 v87, s{sD}, v86\n ds_read_b128 {v(32+4*s,4)}, v87")
        A.i(f"s_lshl_b32 s{sA}, s{sA}, 7\n s_add_u32 s{sA}, s{sA}, {L_MEAN}")
        A.i(f"s_bitcmp1_b32 s{sM}, 0\n s_cbranch_scc1 L_jobV")
        A.i(f"v_and_b32 v87, 31, v0\n v_lshlrev_b32 v87, 2, v87\n v_add_u32 v87, s{sA}, v87\n ds_read_b32 v112, v87\n ds_read_b32 v113, v87 offset:256")
        for s in range(10):
            A.i(f"s_waitcnt lgkmcnt({min(11-s,15)})")
            A.i(f"v_mfma_f32_32x32x16_bf16 v[8:23], {a_(48+4*s,4)}, {v(32+4*s,4)}, {'0' if s == 0 else 'v[8:23]'}")
        A.i("s_waitcnt lgkmcnt(0)")
        for i in range(16):
            A.i(f"v_fma_f32 v{8+i}, -v112, v{96+i}, v{8+i}")
        for i in range(16):
            A.i(f"v_mul_f32 v{8+i}, v113, v{8+i}")
        A.i("s_branch L_jobW")
        A.label("L_jobV")
        A.i(f"v_lshrrev_b32 v87, 5, v0\n v_lshlrev_b32 v87, 4, v87\n v_add_u32 v87, s{sA}, v87")
        for s in range(10):
            A.i(f"s_waitcnt lgkmcnt({9-s})")
            A.i(f"v_mfma_f32_32x32x16_bf16 v[8:23], {v(32+4*s,4)}, {a_(48+4*s,4)}, {'0' if s == 0 else 'v[8:23]'}")
        for q in range(4):
            A.i(f"ds_read_b128 {v(112+4*q,4)}, v87 offset:{32*q}")
        for q in range(4):
            A.i(f"ds_read_b128 {v(32+4*q,4)}, v87 offset:{256+32*q}")
        A.i("s_waitcnt lgkmcnt(0)")
        for i in range(16):
            A.i(f"v_fma_f32 v{8+i}, -v{112+i}, v{96+i}, v{8+i}")
        for i in range(16):
            A.i(f"v_mul_f32 v{8+i}, v{32+i}, v{8+i}")
        A.label("L_jobW")
        A.i(f"s_cmp_eq_u32 s{sW}, 0\n s_cbranch_scc1 L_jobbar")
        A.i(f"s_lshl_b32 s{sA}, s{sW}, 12\n s_add_u32 s{sA}, s{sA}, {L_WK-4096}\n v_add_u32 v86, s{sA}, v1")
        for q in range(4):
            A.i(f"ds_write_b128 v86, {v(8+4*q,4)} offset:{1024*q}")
        A.i("s_waitcnt lgkmcnt(0)")
        A.label("L_jobbar")
        A.i("s_barrier")
        A.i(f"s_cmp_eq_u32 s{sFIN}, 0\n s_cbranch_scc1 L_nojobB")
        A.i(f"v_add_u32 v86, {L_WK}, v1")
        for p in range(3):
            for q in range(4):
                A.i(f"ds_read_b128 {v((32 if p < 2 else 96-32)+16*p+4*q,4)}, v86 offset:{4096*p+1024*q}")
        L = A.newlabel("tok")
        A.i(f"s_mov_b32 s{sSPIN}, 0x20000")
        A.label(L)
        A.i(f"s_waitcnt vmcnt(0)\n v_readfirstlane_b32 s{sT}, v90\n v_readfirstlane_b32 s{sT+1}, v91")
        A.i(f"s_cmp_lg_u32 s{sT+1}, 0\n s_cselect_b32 s{sA}, s{sT}, 0\n s_cmp_lg_u32 s{sA}, 0\n s_cbranch_scc1 {L}_ok")
        A.i(f"buffer_load_dwordx2 v[90:91], off, s[{sDBG}:{sDBG+3}], 0 sc1\n s_sub_u32 s{sSPIN}, s{sSPIN}, 1\n s_cbranch_scc0 {L}")
        A.label(L + "_ok")
        A.i("s_waitcnt lgkmcnt(0)")
        for i in range(16):
            A.i(f"v_add_f32 v{8+i}, v{8+i}, v{32+i}\n v_add_f32 v{48+i}, v{48+i}, v{96+i}")
        for i in range(16):
            A.i(f"v_add_f32 v{8+i}, v{8+i}, v{48+i}")
        for i in range(8):
            A.i(f"v_cvt_pk_bf16_f32 v{32+i}, v{8+2*i}, v{9+2*i}")
        A.i(f"s_lshr_b32 s{sA}, s{sM}, 1\n s_lshl_b32 s{sB}, s{sG}, 1\n s_add_u32 s{sA}, s{sA}, s{sB}\n s_mul_i32 s{sA}, s{sA}, {REC}\n s_add_u32 s{sD}, s{sA}, {KVI}")
        A.i(f"s_bitcmp1_b32 s{sM}, 0\n s_cbranch_scc1 L_finV")
        A.i(f"buffer_store_dwordx4 v[32:35], v1, s[{sWS}:{sWS+3}], s{sD} offen sc1")
        A.i(f"v_lshlrev_b32 v86, 3, v0\n s_mov_b32 exec_hi, 0")
        A.i(f"buffer_store_dwordx2 v[36:37], v86, s[{sWS}:{sWS+3}], s{sD} offen offset:{K2_OFF} sc1")
        A.i("s_mov_b64 exec, -1")
        A.i("v_mul_f32 v122, v8, v8\n v_mul_f32 v87, v16, v16")
        for i in range(1, 8):
            A.i(f"v_fmac_f32 v122, v{8+i}, v{8+i}")
        for i in range(9, 12):
            A.i(f"v_fmac_f32 v87, v{8+i}, v{8+i}")
        A.i("v_cmp_gt_u32 vcc, 32, v0\n v_cndmask_b32 v87, 0, v87, vcc\n v_add_f32 v122, v122, v87")
        self.halves_sum(122, 87)
        self.row16_op("v_max_f32", 122)
        self.rows_op("v_max_f32", 122, 87)
        A.i("s_branch L_finS")
        A.label("L_finV")
        A.i("v_and_b32 v86, 31, v0\n v_cmp_eq_u32 vcc, 20, v86")
        A.i(f"v_mov_b32 v87, s{sONES}")
        for i in range(8):
            A.i(f"v_cndmask_b32 v{32+i}, v{32+i}, v87, vcc")
        A.i("v_lshrrev_b32 v87, 5, v0\n v_mul_u32_u24 v87, 21, v87\n v_add_u32 v87, v87, v86\n v_lshlrev_b32 v87, 4, v87")
        A.i("s_mov_b32 exec_lo, 0x1fffff\n s_mov_b32 exec_hi, 0x1fffff")
        A.i(f"buffer_store_dwordx4 v[32:35], v87, s[{sWS}:{sWS+3}], s{sD} offen offset:{V1_OFF} sc1")
        A.i(f"buffer_store_dwordx4 v[36:39], v87, s[{sWS}:{sWS+3}], s{sD} offen offset:{V2_OFF} sc1")
        A.i("s_mov_b64 exec, -1\n v_mov_b32 v122, 0")
        A.label("L_finS")
        save = list(vm.ops)
        self.loads2()
        vm.ops = save
        A.i(f"s_waitcnt vmcnt({NL2})")
        A.i(f"s_lshl_b32 s{sB}, s{sG}, 2\n s_add_u32 s{sB}, s{sB}, s{sM}")
        self.flag_store(FL1, sB, "v122", 120)
        A.label("L_nojobB")
        self.stamp("kv job")
        A.i(f"s_and_b32 s{sA}, s{sW}, 1\n s_mul_i32 s{sA}, s{sA}, {32*XROW}\n v_add_u32 v94, s{sA}, v94\n v_add_u32 v95, {2*XSEG}, v94")
        A.i(f"s_lshr_b32 s{sA}, s{sW}, 1\n s_mul_i32 s{sA}, s{sA}, 40\n s_add_u32 s{sA}, s{sA}, {L_WQ}")
        A.i(f"v_mul_u32_u24 v96, 160, v92\n v_add3_u32 v96, v96, v93, s{sA}")
        A.i(f"v_and_b32 v86, 15, v0\n s_lshl_b32 s{sA}, s{sR}, 4\n v_add_u32 v86, s{sA}, v86\n v_mul_u32_u24 v86, {XROW}, v86")
        A.i("v_lshrrev_b32 v87, 4, v0\n v_lshlrev_b32 v87, 3, v87\n v_add_u32 v86, v86, v87")
        A.i(f"s_mul_i32 s{sA}, s{sM}, 160\n s_lshl_b32 s{sB}, s{sKH}, 6")
        for j in range(3):
            if j < 2:
                A.i(f"s_add_u32 s{sC}, s{sA}, s{sB}\n s_add_u32 s{sC}, s{sC}, {32*j}")
            else:
                A.i(f"s_add_u32 s{sC}, s{sA}, 128")
            A.i(f"s_lshr_b32 s{sD}, s{sC}, 8\n s_mul_i32 s{sD}, s{sD}, {XSEG}\n s_and_b32 s{sC}, s{sC}, 255\n s_add_u32 s{sC}, s{sC}, s{sD}")
            A.i(f"v_add_u32 v87, s{sC}, v86\n ds_read_b64 {v(2+2*j,2)}, v87")
        A.i("v_mov_b32 v98, 0\n v_mov_b32 v99, 0")
        vm.wait("wq1")
        A.i("s_barrier")
        self.stamp("wq1 ready")
        def qproj(s0, s1, wbase):
            D = 4
            def rd(s):
                j = s % D
                b, o = (94, (s >> 3) * XSEG) if (s >> 3) < 2 else (95, ((s >> 3) - 2) * XSEG)
                A.i(f"ds_read_b128 {v(32+8*j,4)}, v{b} offset:{o + (s & 7)*32}")
                A.i(f"ds_read_b64_tr_b16 {v(36+8*j,2)}, v96 offset:{(s-wbase)*2560}")
                A.i(f"ds_read_b64_tr_b16 {v(38+8*j,2)}, v96 offset:{(s-wbase)*2560+640}")
            for s in range(s0, min(s0 + D - 1, s1)):
                rd(s)
            for s in range(s0, s1):
                if s + D - 1 < s1:
                    rd(s + D - 1)
                left = min(s1 - 1 - s, D - 1)
                A.i(f"s_waitcnt lgkmcnt({3*left})")
                j = s % D
                A.i(f"v_mfma_f32_32x32x16_bf16 v[8:23], {v(36+8*j,4)}, {v(32+8*j,4)}, {'0' if s == 0 else 'v[8:23]'}")
                for q in range(4):
                    A.i(f"v_dot2c_f32_bf16 v{98+(q&1)}, s{sONES}, v{36+8*j+q}")
        qproj(0, 16, 0)
        A.i("s_barrier")
        vm.wait("wq2")
        A.i(f"s_lshl_b32 s{sA}, s{sW}, 10\n s_add_u32 s{sA}, s{sA}, {L_WQ}\n v_add_u32 v86, s{sA}, v1")
        for i in range(8):
            A.i(f"ds_write_b128 v86, {a_(4*i,4)} offset:{i*8192}")
        vm.wait("raw")
        for i in range(3):
            A.i(f"ds_write_b128 v85, {a_(32+4*i,4)} offset:{i*64*TROW}")
        A.i("s_waitcnt lgkmcnt(0)\n s_barrier")
        self.stamp("wq2 ready")
        A.i(f"s_cmp_ge_u32 s{sTB}, 216\n s_cbranch_scc1 L_notr")
        A.i(f"v_lshrrev_b32 v86, 4, v0\n v_lshlrev_b32 v86, 3, v86\n v_bfe_u32 v87, v0, 2, 2\n v_and_b32 v88, 3, v0\n v_lshlrev_b32 v88, 3, v88")
        A.i(f"s_lshl_b32 s{sA}, s{sR}, 5\n v_add_u32 v88, s{sA}, v88")
        for e in range(3):
            for hf in range(2):
                A.i(f"v_bfe_u32 v89, s{sTR+2*e+hf}, v86, 8\n v_add_u32 v89, v89, v87\n v_mul_u32_u24 v89, {TROW}, v89\n v_add_u32 v89, v89, v88")
                A.i(f"ds_read_b64_tr_b16 {v(100+4*e+2*hf,2)}, v89")
        A.i("s_waitcnt lgkmcnt(0)")
        A.i(f"buffer_store_dwordx4 v[100:103], v1, s[{sWS}:{sWS+3}], s{sTDST} offen sc1")
        A.i(f"buffer_store_dwordx4 v[104:107], v1, s[{sWS}:{sWS+3}], s{sTDST} offen offset:2048 sc1")
        A.i(f"s_add_u32 s{sA}, s{sKH}, 4\n s_cmp_ge_u32 s{sA}, s{sTNS}\n s_cbranch_scc1 L_notr")
        A.i(f"s_add_u32 s{sA}, s{sTDST}, 4096")
        A.i(f"buffer_store_dwordx4 v[108:111], v1, s[{sWS}:{sWS+3}], s{sA} offen sc1")
        A.label("L_notr")
        qproj(16, 40, 16)
        A.i("v_add_f32 v98, v98, v99")
        self.halves_sum(98, 99)
        A.i(f"s_lshl_b32 s{sA}, s{sW}, 7\n s_add_u32 s{sA}, s{sA}, {L_CS}\n v_and_b32 v86, 31, v0\n v_lshlrev_b32 v86, 2, v86\n v_add_u32 v87, s{sA}, v86")
        A.i("ds_write_b32 v87, v98")
        A.i(f"v_lshrrev_b32 v88, 5, v0\n v_lshlrev_b32 v88, 4, v88\n v_add_u32 v88, s{sA}, v88")
        A.i(f"s_and_b32 s{sA}, s{sW}, 1\n s_lshl_b32 s{sA}, s{sA}, 7\n s_add_u32 s{sA}, s{sA}, {L_MEAN}\n v_add_u32 v86, s{sA}, v86")
        A.i("ds_read_b32 v44, v86\n ds_read_b32 v45, v86 offset:256")
        for q in range(3):
            A.i(f"ds_read_b128 {v(32+4*q,4)}, v88 offset:{32*q}")
        A.i("s_waitcnt lgkmcnt(0)")
        A.i(f"v_mul_f32 v45, {f32(QSCALE)}, v45")
        for i in range(12):
            A.i(f"v_fma_f32 v{8+i}, -v44, v{32+i}, v{8+i}")
        for i in range(12):
            A.i(f"v_mul_f32 v{8+i}, v45, v{8+i}")
        for i in range(6):
            A.i(f"v_cvt_pk_bf16_f32 v{24+i}, v{8+2*i}, v{9+2*i}")
        A.i("v_mul_f32 v71, v8, v8\n v_mul_f32 v87, v16, v16")
        for i in range(1, 8):
            A.i(f"v_fmac_f32 v71, v{8+i}, v{8+i}")
        for i in range(9, 12):
            A.i(f"v_fmac_f32 v87, v{8+i}, v{8+i}")
        A.i("v_cmp_gt_u32 vcc, 32, v0\n v_cndmask_b32 v87, 0, v87, vcc\n v_add_f32 v71, v71, v87")
        self.halves_sum(71, 87)
        A.i("v_mov_b32 v86, v71")
        self.row16_op("v_max_f32", 86)
        self.rows_op("v_max_f32", 86, 87)
        self.stamp("q done")
        L = A.newlabel("tok")
        A.i(f"s_mov_b32 s{sSPIN}, 0x20000")
        A.label(L)
        A.i(f"s_waitcnt vmcnt(0)\n v_readfirstlane_b32 s{sT}, v90\n v_readfirstlane_b32 s{sT+1}, v91")
        A.i(f"s_cmp_lg_u32 s{sT+1}, 0\n s_cselect_b32 s{sA}, s{sT}, 0\n s_cmp_lg_u32 s{sA}, 0\n s_cbranch_scc1 {L}_ok")
        A.i(f"buffer_load_dwordx2 v[90:91], off, s[{sDBG}:{sDBG+3}], 0 sc1\n s_sub_u32 s{sSPIN}, s{sSPIN}, 1\n s_cbranch_scc0 {L}")
        A.label(L + "_ok")
        vm.ops = []
        A.i(f"v_and_b32 v88, 15, v0\n s_lshl_b32 s{sA}, s{sW}, 4\n v_add_u32 v88, s{sA}, v88\n v_lshlrev_b32 v88, 7, v88")
        self.poll(88, 100, 4)
        self.row16_op("v_max_f32", 102)
        A.i(f"s_lshl_b32 s{sA}, s{sW}, 2\n s_add_u32 s{sA}, s{sA}, {L_VOTE}\n v_mov_b32 v88, s{sA}")
        A.i("ds_write_b32 v88, v86\n ds_write_b32 v88, v102 offset:32\n s_waitcnt lgkmcnt(0)\n s_barrier")
        self.stamp("kv flags")

    def kv_round(self, tag):
        A, vm = self.A, self.vm
        A.i(f"s_add_u32 m0, s{sKVM}, {L_RING}")
        vm.issue(f"buffer_load_dwordx4 v1, s[{sWS}:{sWS+3}], s{sKVO} offen sc1 lds", tag)
        A.i(f"s_add_u32 s{sKVO}, s{sKVO}, 8192\n s_add_u32 s{sKVM}, s{sKVM}, 8192\n s_cmp_ge_u32 s{sKVM}, {RINGSZ}\n s_cselect_b32 s{sA}, {RINGSZ}, 0\n s_sub_u32 s{sKVM}, s{sKVM}, s{sA}")

    def wload_list(self):
        A, vm = self.A, self.vm
        items = []
        def wo(i):
            def f():
                if i == 0:
                    A.i(f"s_mul_i32 s{sWOFF}, s{sM}, 102400\n s_add_u32 s{sWOFF}, s{sWOFF}, {WTO}")
                A.i(f"s_add_u32 s{sA}, s{sW}, {8*i}")
                if i == 12:
                    A.i(f"s_min_u32 s{sA}, s{sA}, 99")
                A.i(f"s_lshl_b32 m0, s{sA}, 10\n s_add_u32 s{sA}, m0, s{sWOFF}")
                vm.issue(f"buffer_load_dwordx4 v1, s[{sWS}:{sWS+3}], s{sA} offen sc1 lds", "w")
            return f
        def w1(j, i):
            def f():
                if j == 0 and i == 0:
                    A.i(f"s_lshl_b32 s{sA}, s{sM}, 2\n s_add_u32 s{sA}, s{sA}, s{sR}\n s_mul_i32 s{sA}, s{sA}, 60\n s_mul_i32 s{sB}, s{sKH}, 10\n s_add_u32 s{sA}, s{sA}, s{sB}")
                    A.i(f"s_lshl_b32 s{sA}, s{sA}, 10\n s_add_u32 s{sWOFF}, s{sA}, {WT1}")
                o = (j * 20 + i) * 1024
                A.i(f"s_add_u32 s{sA}, s{sWOFF}, {o & ~4095}")
                vm.issue(f"buffer_load_dwordx4 {a_(4*(10*j+i),4)}, v1, s[{sWS}:{sWS+3}], s{sA} offen offset:{o & 4095} sc1", "w")
            return f
        for i in range(13):
            items.append(wo(i))
        for j in range(3):
            for i in range(10):
                items.append(w1(j, i))
        for k in range(12):
            items.append(lambda k=k: self.w2load(k, first=(k == 0)))
        return items

    def w2reg(self, k):
        return v(80 + 4 * k, 4) if k < 12 else a_(4 * (k - 12), 4)

    def w2load(self, k, first=False):
        A, vm = self.A, self.vm
        if first:
            A.i(f"s_mul_i32 s{sA}, s{sM}, 240\n s_mul_i32 s{sB}, s{sW}, 6\n s_add_u32 s{sA}, s{sA}, s{sB}\n s_lshl_b32 s{sA}, s{sA}, 10\n s_add_u32 s{sWOFF}, s{sA}, {WT2}")
            A.i(f"s_mul_i32 s{sE}, s{sKH}, {2*48*1024}\n s_sub_u32 s{sF}, {2*48*1024}, s{sE}\n s_add_u32 s{sE}, s{sE}, s{sWOFF}\n s_add_u32 s{sF}, s{sF}, s{sWOFF}")
        i, j = k // 5, k % 5
        if j < 2:
            base, o = sE, (j * 48 + i) * 1024
        elif j == 2:
            base, o = sWOFF, (4 * 48 + i) * 1024
        else:
            base, o = sF, ((j - 3) * 48 + i) * 1024
        A.i(f"s_add_u32 s{sA}, s{base}, {o & ~4095}")
        vm.issue(f"buffer_load_dwordx4 {self.w2reg(k)}, v1, s[{sWS}:{sWS+3}], s{sA} offen offset:{o & 4095} sc1", "w")

    def fl2_addr(self, r):
        self.A.i(f"v_and_b32 v{r}, 31, v0\n s_lshl_b32 s{sA}, s{sW}, 5\n v_add_u32 v{r}, s{sA}, v{r}\n v_lshlrev_b32 v{r}, 7, v{r}\n v_add_u32 v{r}, {FL2}, v{r}")

    def attention(self):
        A, vm = self.A, self.vm
        O, Q1, Q2, SX, SY, K1, K2, V1, V2, aK1, aK2, aV = 8, 24, 28, 32, 48, 64, 68, 72, 76, 30, 31, 70
        A.i(f"s_cmp_lg_u32 s{sW}, 0\n s_cbranch_scc1 L_nofl2")
        A.i(f"s_getreg_b32 s{sB}, hwreg(HW_REG_XCC_ID)\n s_and_b32 s{sB}, s{sB}, 15")
        self.flag_store(FL2, 2, f"s{sB}", 120)
        A.label("L_nofl2")
        A.i(f"s_lshl_b32 s{sKVM}, s{sW}, 10\n s_add_u32 s{sKVO}, s{sKVM}, {KVI}")
        NR0 = 4
        for r in range(NR0):
            self.kv_round(f"kv{r}")
        A.i(f"v_and_b32 v88, 7, v0\n v_lshlrev_b32 v88, 2, v88\n v_add_u32 v88, {L_VOTE}, v88\n ds_read_b32 v86, v88\n ds_read_b32 v87, v88 offset:32")
        A.i(f"v_add_u32 v{aK1}, {L_RING}, v1")
        A.i(f"v_and_b32 v88, 31, v0\n v_lshlrev_b32 v{aK2}, 3, v88\n v_add_u32 v{aK2}, {L_RING+K2_OFF}, v{aK2}\n v_mov_b32 v89, {L_RING+V1_OFF+320}")
        A.i(f"v_cmp_gt_u32 vcc, 32, v0\n v_cndmask_b32 v{aK2}, v89, v{aK2}, vcc")
        A.i(f"v_min_u32 v88, 20, v88\n v_lshrrev_b32 v89, 5, v0\n v_mul_u32_u24 v89, 21, v89\n v_add_u32 v88, v88, v89\n v_lshlrev_b32 v88, 4, v88\n v_add_u32 v{aV}, {L_RING}, v88")
        for i in range(16):
            A.i(f"v_mov_b32 v{O+i}, 0")
        for i in range(4):
            A.i(f"v_mov_b32 v{SY+8+i}, 0\n v_mov_b32 v{V2+i}, 0")
        A.i("s_waitcnt lgkmcnt(0)")
        self.row16_op("v_max_f32", 86)
        self.row16_op("v_max_f32", 87)
        A.i(f"v_mul_f32 v71, v71, v87\n v_sqrt_f32 v71, v71\n v_mul_f32 v86, v86, v87\n v_mul_f32 v71, {f32(-1.02)}, v71\n v_cvt_pk_bf16_f32 v71, v71, 0")
        A.i(f"v_cmp_gt_u32 s[{sEX}:{sEX+1}], 32, v0")
        A.i(f"v_cndmask_b32 v{Q2+1}, 0, v{Q2+1}, s[{sEX}:{sEX+1}]")
        A.i(f"v_mov_b32 v88, {f32((MLIM/1.02)**2)}\n v_cmp_le_f32 vcc, v86, v88")
        if self.force_slow:
            A.i("s_branch L_slow")
        else:
            A.i("s_cbranch_vccz L_slow")
        A.i(f"v_cndmask_b32 v{Q2}, v71, v{Q2}, s[{sEX}:{sEX+1}]")
        slow_ops = list(vm.ops)

        def off(slot, o):
            return (slot % 16) * REC + o
        vm.wait("kv1")
        A.i("s_barrier")
        self.stamp("attn start")
        A.i(f"ds_read_b128 {v(K1,4)}, v{aK1} offset:{off(0,0)}\n ds_read_b64 {v(K2,2)}, v{aK2} offset:{off(0,0)}\n s_waitcnt lgkmcnt(0)")
        A.i(f"v_mfma_f32_32x32x16_bf16 {v(SX,16)}, {v(K1,4)}, {v(Q1,4)}, 0")
        A.i(f"v_mfma_f32_32x32x8_bf16 {v(SX,16)}, {v(K2,2)}, {v(Q2,2)}, {v(SX,16)}")
        A.i(f"ds_read_b128 {v(K1,4)}, v{aK1} offset:{off(1,0)}\n ds_read_b64 {v(K2,2)}, v{aK2} offset:{off(1,0)}\n ds_read_b128 {v(V1,4)}, v{aV} offset:{off(0,V1_OFF)}")
        witems = self.wload_list()
        next_round = NR0
        NROUND = 21
        verified = False
        pend = []
        for t in range(64):
            if t % 4 == 2:
                j = t // 4
                if j < 15:
                    need_piece = math.ceil((j + 2) * 10.25) - 1
                    vm.wait(f"kv{need_piece // 8}")
                if j == 1:
                    vm.wait("fl2")
                    A.i(f"v_cmp_ne_u64 vcc, s[{sT}:{sT+1}], v[80:81]\n s_cbranch_vccz L_fl2ok")
                    save = list(vm.ops)
                    self.poll(84, 80, 2)
                    vm.ops = save
                    A.label("L_fl2ok")
                    verified = True
                if j < 15:
                    A.i("s_barrier")
                while next_round < NROUND and 8 * next_round + 7 - 41 < math.floor(j * 10.25):
                    pend.append(lambda r=next_round: self.kv_round(f"kv{r}"))
                    next_round += 1
            if t == 3:
                def fl2():
                    self.fl2_addr(84)
                    vm.issue(f"buffer_load_dwordx2 v[80:81], v84, s[{sWS}:{sWS+3}], 0 offen sc1", "fl2")
                pend.append(fl2)
            def hook():
                if pend:
                    pend.pop(0)()
                    return
                if verified and witems and (len(witems) * 2 >= (61 - t) or True):
                    witems.pop(0)()
            X, Y = (SX, SY) if t % 2 == 0 else (SY, SX)
            def ex(i):
                A.i(f"v_exp_f32 v{X+i}, v{X+i}")
            def cv(i):
                d = X + (i if i < 4 else 8 + (i - 4))
                A.i(f"v_cvt_pk_bf16_f32 v{d}, v{X+2*i}, v{X+2*i+1}")
            A.i(f"s_setprio {3 - 2*(t % 2)}")
            ex(0); ex(1)
            A.i("s_waitcnt lgkmcnt(3)")
            A.i(f"v_mfma_f32_32x32x16_bf16 {v(O,16)}, {v(V2,4)}, {v(Y+8,4)}, {v(O,16)}")
            A.i(f"ds_read_b128 {v(V2,4)}, v{aV} offset:{off(t, V2_OFF)}")
            ex(2); ex(3); cv(0); cv(1); ex(4)
            hook()
            ex(5)
            A.i("s_waitcnt lgkmcnt(3)")
            A.i(f"v_mfma_f32_32x32x16_bf16 {v(Y,16)}, {v(K1,4)}, {v(Q1,4)}, 0")
            A.i(f"ds_read_b128 {v(K1,4)}, v{aK1} offset:{off(t+2, 0)}")
            ex(6); ex(7)
            A.i(f"s_setprio {2 - 2*(t % 2)}")
            cv(2); cv(3); ex(8); ex(9)
            A.i("s_waitcnt lgkmcnt(3)")
            A.i(f"v_mfma_f32_32x32x8_bf16 {v(Y,16)}, {v(K2,2)}, {v(Q2,2)}, {v(Y,16)}")
            A.i(f"ds_read_b64 {v(K2,2)}, v{aK2} offset:{off(t+2, 0)}")
            ex(10); ex(11); cv(4); cv(5); ex(12)
            if pend or (t % 4 == 1):
                hook()
            ex(13)
            A.i("s_waitcnt lgkmcnt(3)")
            A.i(f"v_mfma_f32_32x32x16_bf16 {v(O,16)}, {v(V1,4)}, {v(X,4)}, {v(O,16)}")
            A.i(f"ds_read_b128 {v(V1,4)}, v{aV} offset:{off(t+1, V1_OFF)}")
            ex(14); ex(15); cv(6); cv(7)
        assert not pend and next_round == NROUND, (len(pend), next_round)
        while witems:
            witems.pop(0)()
        A.i("s_setprio 0\n s_waitcnt lgkmcnt(0)")
        A.i(f"v_mfma_f32_32x32x16_bf16 {v(O,16)}, {v(V2,4)}, {v(SY+8,4)}, {v(O,16)}")
        A.label("L_attn_done")
        A.i("s_nop 11")
        self.slow_ops = slow_ops

    def slow_attention(self):
        A, vm = self.A, self.vm
        O, Q1, Q2, S, K1, K2, V1, V2, aK1, aK2, aV = 8, 24, 28, 32, 64, 68, 72, 76, 30, 31, 70
        M, MN, AL, T = 48, 49, 50, 51
        A.hist = []
        A.label("L_slow")
        A.i(f"v_cndmask_b32 v{Q2}, 0, v{Q2}, s[{sEX}:{sEX+1}]")
        A.i(f"v_mov_b32 v{M}, 0xff800000")
        A.i(f"s_mov_b32 s{sC}, 0")
        A.i(f"s_mul_i32 s{sD}, s{sW}, 1312")
        A.label("L_sq")
        A.i("s_waitcnt vmcnt(0) lgkmcnt(0)\n s_barrier")
        A.i(f"s_mul_i32 s{sA}, s{sC}, {4*REC}\n s_add_u32 s{sA}, s{sA}, s{sD}\n s_add_u32 s{sA}, s{sA}, {KVI}\n s_add_u32 m0, s{sD}, {L_RING}")
        A.i(f"buffer_load_dwordx4 v1, s[{sWS}:{sWS+3}], s{sA} offen sc1 lds\n s_mov_b64 exec, 0x3ffff")
        A.i(f"buffer_load_dwordx4 v1, s[{sWS}:{sWS+3}], s{sA} offen offset:1024 sc1 lds\n s_mov_b64 exec, -1")
        A.i("s_waitcnt vmcnt(0)\n s_barrier")
        for t in range(4):
            o = t * REC
            A.i(f"ds_read_b128 {v(K1,4)}, v{aK1} offset:{o}\n ds_read_b64 {v(K2,2)}, v{aK2} offset:{o}")
            A.i(f"ds_read_b128 {v(V1,4)}, v{aV} offset:{o+V1_OFF}\n ds_read_b128 {v(V2,4)}, v{aV} offset:{o+V2_OFF}\n s_waitcnt lgkmcnt(0)")
            A.i(f"v_mfma_f32_32x32x16_bf16 {v(S,16)}, {v(K1,4)}, {v(Q1,4)}, 0")
            A.i(f"v_mfma_f32_32x32x8_bf16 {v(S,16)}, {v(K2,2)}, {v(Q2,2)}, {v(S,16)}")
            A.i(f"v_max3_f32 v{MN}, v{M}, v{S}, v{S+1}")
            for i in range(1, 8):
                A.i(f"v_max3_f32 v{MN}, v{MN}, v{S+2*i}, v{S+2*i+1}")
            A.i(f"v_mov_b32 v{T}, v{MN}\n v_permlane32_swap_b32 v{MN}, v{T}\n v_max_f32 v{MN}, v{MN}, v{T}")
            A.i(f"v_sub_f32 v{AL}, v{M}, v{MN}\n v_exp_f32 v{AL}, v{AL}\n v_mov_b32 v{M}, v{MN}")
            for i in range(16):
                A.i(f"v_sub_f32 v{S+i}, v{S+i}, v{MN}")
            for i in range(16):
                A.i(f"v_exp_f32 v{S+i}, v{S+i}")
            for i in range(12):
                A.i(f"v_mul_f32 v{O+i}, v{AL}, v{O+i}")
            for i in range(8):
                A.i(f"v_cvt_pk_bf16_f32 v{S+i}, v{S+2*i}, v{S+2*i+1}")
            A.i(f"v_mfma_f32_32x32x16_bf16 {v(O,16)}, {v(V1,4)}, {v(S,4)}, {v(O,16)}")
            A.i(f"v_mfma_f32_32x32x16_bf16 {v(O,16)}, {v(V2,4)}, {v(S+4,4)}, {v(O,16)}")
            A.flush()
        A.i(f"s_add_u32 s{sC}, s{sC}, 1\n s_cmp_lt_u32 s{sC}, 16\n s_cbranch_scc1 L_sq")
        self.fl2_addr(84)
        self.poll(84, 80, 2)
        A.i("s_barrier")
        for f in self.wload_list():
            f()
        A.i("s_branch L_attn_done")
        A.hist = []

    def publish(self, phase):
        A = self.A
        A.i("s_barrier")
        L = A.newlabel("nofl")
        A.i(f"s_cmp_lg_u32 s{sW}, 0\n s_cbranch_scc1 {L}")
        A.i(f"s_lshl_b32 s{sB}, s{sG}, 3\n s_add_u32 s{sB}, s{sB}, s{sM}")
        self.flag_store(FL3 + phase * 0x8000, sB, None, 72)
        A.label(L)

    def group_poll(self, phase):
        A = self.A
        A.i(f"v_and_b32 v76, 7, v0\n s_lshl_b32 s{sA}, s{sG}, 3\n v_add_u32 v76, s{sA}, v76\n v_lshlrev_b32 v76, 7, v76\n v_add_u32 v76, {FL3 + phase*0x8000}, v76")
        self.poll(76, 78, 2)

    def tail(self):
        A, vm = self.A, self.vm
        O = 8
        self.stamp("attn end")
        A.i("v_mov_b32 v32, v16\n v_mov_b32 v33, v16\n v_permlane32_swap_b32 v32, v33\n v_rcp_f32 v33, v33")
        for i in range(12):
            A.i(f"v_mul_f32 v{O+i}, v33, v{O+i}")
        for i in range(6):
            A.i(f"v_cvt_pk_bf16_f32 v{36+i}, v{O+2*i}, v{O+2*i+1}")
        A.i("v_bfe_u32 v32, v0, 4, 1\n v_mul_u32_u24 v32, 20480, v32\n v_and_b32 v33, 15, v0\n v_lshlrev_b32 v33, 4, v33\n v_add_u32 v32, v32, v33")
        A.i("v_lshrrev_b32 v33, 5, v0\n v_lshlrev_b32 v33, 8, v33\n v_add_u32 v33, v33, v32")
        A.i(f"s_lshr_b32 s{sA}, s{sM}, 1\n s_mul_i32 s{sA}, s{sA}, 5\n s_and_b32 s{sB}, s{sW}, 1\n s_mul_i32 s{sB}, s{sB}, 40\n s_add_u32 s{sA}, s{sA}, s{sB}")
        A.i(f"s_lshl_b32 s{sA}, s{sA}, 10\n s_mul_i32 s{sB}, s{sG}, {OXG}\n s_add_u32 s{sA}, s{sA}, s{sB}\n s_add_u32 s{sA}, s{sA}, {OX}")
        A.i(f"s_and_b32 s{sB}, s{sM}, 1\n s_lshl_b32 s{sB}, s{sB}, 1\n s_add_u32 s{sB}, s{sB}, s{sKH}")
        A.i(f"s_bfe_u32 s{sC}, s{sW}, 0x10001")
        A.i(f"s_lshl_b32 s{sD}, s{sB}, 10\n s_lshl_b32 s{sE}, s{sC}, 9\n s_add_u32 s{sD}, s{sD}, s{sE}\n s_add_u32 s{sD}, s{sD}, s{sA}")
        A.i(f"buffer_store_dwordx4 v[36:39], v33, s[{sWS}:{sWS+3}], s{sD} offen sc1")
        A.i(f"s_lshl_b32 s{sD}, s{sB}, 8\n s_lshl_b32 s{sE}, s{sC}, 3\n s_add_u32 s{sD}, s{sD}, s{sE}\n s_add_u32 s{sD}, s{sD}, s{sA}\n s_add_u32 s{sD}, s{sD}, 4096")
        A.i("s_mov_b32 exec_hi, 0")
        A.i(f"buffer_store_dwordx2 v[40:41], v32, s[{sWS}:{sWS+3}], s{sD} offen sc1")
        A.i("s_mov_b64 exec, -1")
        vm.drain()
        self.publish(0)
        self.stamp("o published")
        for j in range(4):
            A.i(f"v_mov_b32 v{32+j}, s{sONES}")
        for i in range(10):
            for j in range(3):
                A.i(f"v_mfma_f32_16x16x32_bf16 {v(56+4*j,4)}, {a_(4*(10*j+i),4)}, v[32:35], {'0' if i == 0 else v(56+4*j,4)}")
        A.i(f"s_mul_i32 s{sA}, s{sW}, 3072\n s_add_u32 s{sA}, s{sA}, {L_CSX}\n v_add_u32 v68, s{sA}, v1")
        for j in range(3):
            A.i(f"ds_write_b128 v68, {v(56+4*j,4)} offset:{1024*j}")
        A.i(f"s_mul_i32 s{sA}, s{sKH}, 10240\n s_mul_i32 s{sB}, s{sKH}, 40960\n s_add_u32 s{sC}, s{sA}, s{sB}\n v_add_u32 v69, s{sC}, v1")
        A.i(f"s_add_u32 s{sC}, s{sA}, 81920\n v_add_u32 v70, s{sC}, v1")
        A.i(f"s_sub_u32 s{sC}, 40960, s{sB}\n s_add_u32 s{sC}, s{sC}, s{sA}\n v_add_u32 v71, s{sC}, v1")
        self.group_poll(0)
        self.stamp("o flags")
        A.i(f"s_mul_i32 s{sA}, s{sR}, 20\n s_mul_i32 s{sB}, s{sKH}, 10\n s_add_u32 s{sA}, s{sA}, s{sB}\n s_lshl_b32 s{sA}, s{sA}, 10")
        A.i(f"s_mul_i32 s{sB}, s{sG}, {OXG}\n s_add_u32 s{sA}, s{sA}, s{sB}\n s_add_u32 s{sA}, s{sA}, {OX}\n s_add_u32 s{sB}, s{sA}, 4096\n s_add_u32 s{sC}, s{sA}, 8192")
        for i in range(10):
            vm.issue(f"buffer_load_dwordx4 {v(8+4*i,4)}, v1, s[{sWS}:{sWS+3}], s{(sA,sB,sC)[i//4]} offen offset:{(i%4)*1024} sc1", f"o{i}")
        ACC = 48
        ring = [v(72,4), v(76,4), a_(120,4), a_(124,4)]
        seq = [(i, j) for i in range(10) for j in range(5)]
        def wrd(n):
            i, j = seq[n]
            b, o = ((69, j * 20480) if j < 2 else (70, 0) if j == 2 else (71, (j - 3) * 20480))
            A.i(f"ds_read_b128 {ring[n % 4]}, v{b} offset:{o + i*1024}")
        A.i("s_waitcnt lgkmcnt(0)")
        for n in range(3):
            wrd(n)
        for n, (i, j) in enumerate(seq):
            if n + 3 < len(seq):
                wrd(n + 3)
            if j == 0:
                vm.wait(f"o{i}")
            A.i(f"s_waitcnt lgkmcnt({min(3, len(seq)-1-n)})")
            A.i(f"v_mfma_f32_16x16x32_bf16 {v(ACC+4*j,4)}, {ring[n % 4]}, {v(8+4*i,4)}, {'0' if i == 0 else v(ACC+4*j,4)}")
        A.i(f"s_mul_i32 s{sA}, s{sW}, 3072\n s_add_u32 s{sA}, s{sA}, {L_P3X}\n v_add_u32 v68, s{sA}, v1")
        A.i(f"s_xor_b32 s{sB}, s{sW}, 4\n s_mul_i32 s{sB}, s{sB}, 3072\n s_add_u32 s{sA}, s{sB}, {L_P3X}\n v_add_u32 v69, s{sA}, v1")
        A.i(f"ds_write_b128 v68, {v(ACC+12,4)}\n ds_write_b128 v68, {v(ACC+16,4)} offset:1024\n ds_write_b128 v68, {v(ACC+8,4)} offset:2048")
        A.i("s_waitcnt lgkmcnt(0)\n s_barrier")
        for j in range(3):
            A.i(f"ds_read_b128 {v(8+4*j,4)}, v69 offset:{1024*j}")
        for j in range(3):
            A.i(f"ds_read_b128 {v(20+4*j,4)}, v68 offset:{L_CSX-L_P3X+1024*j}")
        for j in range(3):
            A.i(f"ds_read_b128 {v(32+4*j,4)}, v69 offset:{L_CSX-L_P3X+1024*j}")
        for j in range(3):
            for p in range(2):
                A.i(f"v_lshlrev_b32 v{60+2*p}, 16, v{2+2*j+p}\n v_and_b32 v{61+2*p}, 0xffff0000, v{2+2*j+p}")
            for q in range(4):
                A.i(f"v_add_f32 v{ACC+4*j+q}, v{ACC+4*j+q}, v{60+q}")
        A.i("s_waitcnt lgkmcnt(6)")
        for i in range(12):
            A.i(f"v_add_f32 v{ACC+i}, v{ACC+i}, v{8+i}")
        for i in range(6):
            A.i(f"v_cvt_pk_bf16_f32 v{2+i}, v{ACC+2*i}, v{ACC+2*i+1}")
        A.i(f"s_lshr_b32 s{sA}, s{sM}, 1\n s_mul_i32 s{sA}, s{sA}, 5\n s_mul_i32 s{sB}, s{sR}, 20\n s_add_u32 s{sA}, s{sA}, s{sB}\n s_lshl_b32 s{sA}, s{sA}, 10")
        A.i(f"s_mul_i32 s{sF}, s{sG}, {HXG}\n s_add_u32 s{sF}, s{sF}, {HX}\n s_add_u32 s{sA}, s{sA}, s{sF}")
        A.i(f"s_and_b32 s{sB}, s{sM}, 1\n s_lshl_b32 s{sB}, s{sB}, 1\n s_add_u32 s{sC}, s{sB}, s{sKH}\n s_lshl_b32 s{sC}, s{sC}, 10\n s_add_u32 s{sC}, s{sC}, s{sA}")
        A.i(f"buffer_store_dwordx4 v[2:5], v1, s[{sWS}:{sWS+3}], s{sC} offen sc1")
        A.i("v_mov_b32 v60, 0\n v_mov_b32 v61, 0")
        A.i(f"s_cmp_lg_u32 s{sKH}, 0\n s_cbranch_scc1 L_not4")
        A.i("v_mov_b32 v64, v6\n v_mov_b32 v65, v7\n v_mov_b32 v66, v6\n v_mov_b32 v67, v7\n v_permlane16_swap_b32 v64, v66\n v_permlane16_swap_b32 v65, v67")
        A.i("v_lshrrev_b32 v62, 5, v0\n v_lshlrev_b32 v62, 8, v62\n v_and_b32 v63, 15, v0\n v_lshlrev_b32 v63, 4, v63\n v_add_u32 v62, v62, v63")
        A.i(f"s_lshl_b32 s{sB}, s{sB}, 8\n s_add_u32 s{sB}, s{sB}, s{sA}\n s_add_u32 s{sB}, s{sB}, 4096")
        A.i(f"buffer_store_dwordx4 v[64:67], v62, s[{sWS}:{sWS+3}], s{sB} offen sc1")
        for r in (6, 7):
            A.i(f"v_dot2c_f32_bf16 v60, s{sONES}, v{r}\n v_dot2c_f32_bf16 v61, v{r}, v{r}")
        A.label("L_not4")
        for r in (2, 3, 4, 5):
            A.i(f"v_dot2c_f32_bf16 v60, s{sONES}, v{r}\n v_dot2c_f32_bf16 v61, v{r}, v{r}")
        self.rows_op("v_add_f32", 60, 62)
        self.rows_op("v_add_f32", 61, 63)
        A.i(f"s_lshl_b32 s{sA}, s{sM}, 1\n s_add_u32 s{sA}, s{sA}, s{sKH}\n s_lshl_b32 s{sA}, s{sA}, 9\n s_lshl_b32 s{sB}, s{sR}, 7\n s_add_u32 s{sA}, s{sA}, s{sB}")
        A.i(f"s_add_u32 s{sA}, s{sA}, s{sF}\n s_add_u32 s{sA}, s{sA}, {L_HST}\n v_lshlrev_b32 v62, 3, v0\n s_mov_b64 exec, 0xffff")
        A.i(f"buffer_store_dwordx2 v[60:61], v62, s[{sWS}:{sWS+3}], s{sA} offen sc1\n s_mov_b64 exec, -1")
        A.i("s_waitcnt lgkmcnt(0)")
        for i in range(12):
            A.i(f"v_add_f32 v{56+i}, v{20+i}, v{32+i}")
        vm.drain()
        self.publish(1)
        self.stamp("h published")
        self.group_poll(1)
        self.stamp("h flags")
        A.i(f"s_lshl_b32 s{sA}, s{sW}, 10")
        for i in range(11):
            A.i(f"s_add_u32 m0, s{sA}, {8192*i}\n s_add_u32 s{sB}, m0, s{sF}")
            vm.issue(f"buffer_load_dwordx4 v1, s[{sWS}:{sWS+3}], s{sB} offen sc1 lds", "h")
        A.i(f"s_mul_i32 s{sA}, s{sKH}, 10240\n s_mul_i32 s{sB}, s{sKH}, 40960\n s_add_u32 s{sC}, s{sA}, s{sB}\n v_add_u32 v69, s{sC}, v1")
        A.i(f"s_sub_u32 s{sC}, 40960, s{sB}\n s_add_u32 s{sC}, s{sC}, s{sA}\n v_add_u32 v71, s{sC}, v1")
        A.i(f"s_mul_i32 s{sA}, s{sW}, 6144\n s_add_u32 s{sA}, s{sA}, {L_F1X}\n v_add_u32 v68, s{sA}, v1")
        A.i(f"s_xor_b32 s{sB}, s{sW}, 4\n s_mul_i32 s{sB}, s{sB}, 6144\n s_add_u32 s{sA}, s{sB}, {L_F1X}\n v_add_u32 v70, s{sA}, v1")
        vm.drain()
        A.i("s_barrier")
        self.stamp("h in lds")
        seq = [(p, i, rr) for p in range(2) for i in range(10) for rr in range(2)]
        def hrd(n):
            p, i, rr = seq[n]
            A.i(f"ds_read_b128 {ring[n % 4]}, v{71 if p == 0 else 69} offset:{rr*20480 + i*1024}")
        for n in range(3):
            hrd(n)
        extra = 0
        for n, (p, i, rr) in enumerate(seq):
            if n + 3 < len(seq):
                hrd(n + 3)
            A.i(f"s_waitcnt lgkmcnt({min(3, len(seq)-1-n) + extra})")
            extra = 0
            for j in range(3):
                acc = 8 + 24 * p + 12 * rr + 4 * j
                A.i(f"v_mfma_f32_16x16x32_bf16 {v(acc,4)}, {a_(4*(10*j+i),4)}, {ring[n % 4]}, {'0' if i == 0 else v(acc,4)}")
            if p == 1 and 2 <= n - 20 < 8:
                q = n - 22
                A.i(f"ds_write_b128 v68, {v(8+4*q,4)} offset:{1024*q}")
        A.i(f"v_lshrrev_b32 v72, 4, v0\n v_lshlrev_b32 v72, 11, v72\n v_and_b32 v73, 15, v0\n v_lshlrev_b32 v73, 3, v73\n v_add_u32 v72, v72, v73")
        A.i(f"s_lshl_b32 s{sA}, s{sKH}, 8\n s_add_u32 s{sA}, s{sA}, {L_HST}\n v_add_u32 v72, s{sA}, v72")
        A.i("s_waitcnt lgkmcnt(0)")
        for rr in range(2):
            for q in range(4):
                A.i(f"ds_read_b64 {v(8+8*rr+2*q,2)}, v72 offset:{512*q + 128*rr}")
        A.i("s_waitcnt lgkmcnt(0)\n s_barrier")
        for rr in range(2):
            b = 8 + 8 * rr
            A.i(f"v_add_f32 v{b}, v{b}, v{b+2}\n v_add_f32 v{b+1}, v{b+1}, v{b+3}\n v_add_f32 v{b+4}, v{b+4}, v{b+6}\n v_add_f32 v{b+5}, v{b+5}, v{b+7}")
            A.i(f"v_add_f32 v{72+2*rr}, v{b}, v{b+4}\n v_add_f32 v{73+2*rr}, v{b+1}, v{b+5}")
        for q in range(6):
            A.i(f"ds_read_b128 {v(8+4*q,4)}, v70 offset:{1024*q}")
        for k in range(4):
            self.rows_op("v_add_f32", 72 + k, 76 + k)
        for rr in range(2):
            mu, sq = 72 + 2 * rr, 73 + 2 * rr
            A.i(f"v_mul_f32 v{mu}, {f32(1/640)}, v{mu}\n v_mul_f32 v{sq}, {f32(1/640)}, v{sq}")
            A.i(f"v_fma_f32 v{sq}, -v{mu}, v{mu}, v{sq}\n v_max_f32 v{sq}, 0, v{sq}\n v_add_f32 v{sq}, {f32(1e-5)}, v{sq}\n v_rsq_f32 v{sq}, v{sq}")
        for rr in range(2):
            for i in range(12):
                A.i(f"v_fma_f32 v{32+12*rr+i}, -v{72+2*rr}, v{56+i}, v{32+12*rr+i}")
        A.i("s_waitcnt lgkmcnt(0)")
        for i in range(24):
            A.i(f"v_add_f32 v{32+i}, v{32+i}, v{8+i}")
        for rr in range(2):
            for i in range(12):
                A.i(f"v_mul_f32 v{32+12*rr+i}, v{73+2*rr}, v{32+12*rr+i}")
        for rr in range(2):
            for i in range(6):
                d = 8 + 4 * rr + i if i < 4 else 16 + 2 * rr + (i - 4)
                A.i(f"v_cvt_pk_bf16_f32 v{d}, v{32+12*rr+2*i}, v{33+12*rr+2*i}")
        for d in range(8, 20):
            A.i(f"v_pk_max_i16 v{d}, v{d}, 0")
        A.i("v_permlane16_swap_b32 v16, v18\n v_permlane16_swap_b32 v17, v19")
        A.i(f"s_mul_i32 s{sA}, s{sKH}, 96\n s_mul_i32 s{sB}, s{sM}, 6\n s_add_u32 s{sA}, s{sA}, s{sB}\n s_lshl_b32 s{sA}, s{sA}, 10")
        A.i(f"s_mul_i32 s{sD}, s{sG}, {FXG}\n s_add_u32 s{sD}, s{sD}, {FX}\n s_add_u32 s{sA}, s{sA}, s{sD}")
        A.i(f"s_lshl_b32 s{sB}, s{sR}, 10\n s_add_u32 s{sB}, s{sB}, s{sA}\n s_add_u32 s{sC}, s{sB}, {48*1024}")
        vm.issue(f"buffer_store_dwordx4 v[8:11], v1, s[{sWS}:{sWS+3}], s{sB} offen sc1")
        vm.issue(f"buffer_store_dwordx4 v[12:15], v1, s[{sWS}:{sWS+3}], s{sC} offen sc1")
        A.i("v_bfe_u32 v20, v0, 4, 1\n v_mul_u32_u24 v20, 49152, v20\n v_lshrrev_b32 v21, 5, v0\n v_lshlrev_b32 v21, 8, v21\n v_add_u32 v20, v20, v21")
        A.i("v_and_b32 v21, 15, v0\n v_lshlrev_b32 v21, 4, v21\n v_add_u32 v20, v20, v21")
        A.i(f"s_lshl_b32 s{sB}, s{sR}, 9\n s_add_u32 s{sB}, s{sB}, s{sA}\n s_add_u32 s{sB}, s{sB}, 4096")
        vm.issue(f"buffer_store_dwordx4 v[16:19], v20, s[{sWS}:{sWS+3}], s{sB} offen sc1", "fst")
        for k in range(12, 30):
            self.w2load(k, first=(k == 12))
        vm.wait("fst")
        self.publish(2)
        self.stamp("f published")
        self.group_poll(2)
        self.stamp("f flags")
        def freg(n):
            return a_(72 + 4 * n, 4) if n < 14 else v(8 + 4 * (n - 14), 4)
        A.i(f"s_mul_i32 s{sA}, s{sW}, 6144\n s_add_u32 s{sD}, s{sD}, s{sA}")
        for e in range(4):
            A.i(f"s_add_u32 s{sA}, s{sR}, {e+1}\n s_and_b32 s{sA}, s{sA}, 3\n s_mul_i32 s{sA}, s{sA}, 49152\n s_add_u32 s{sA}, s{sA}, s{sD}\n s_add_u32 s{sB}, s{sA}, 4096")
            for i in range(6):
                vm.issue(f"buffer_load_dwordx4 {freg(6*e+i)}, v1, s[{sWS}:{sWS+3}], s{sA if i < 4 else sB} offen offset:{(i%4)*1024} sc1", f"f{6*e+i}")
        A.i(f"s_lshl_b32 s{sE}, s{sKH}, 14\n s_sub_u32 s{sF}, 16384, s{sE}\n s_lshl_b32 s{sC}, s{sW}, 10")
        ACC = 48
        for e in range(4):
            for i in range(6):
                vm.wait(f"f{6*e+i}")
                for j in range(5):
                    A.i(f"v_mfma_f32_16x16x32_bf16 {v(ACC+4*j,4)}, {self.w2reg(5*i+j)}, {freg(6*e+i)}, {'0' if i == 0 else v(ACC+4*j,4)}")
            A.i(f"s_add_u32 s{sA}, s{sR}, {e+1}\n s_and_b32 s{sA}, s{sA}, 3\n s_mul_i32 s{sA}, s{sA}, 40960\n s_add_u32 s{sA}, s{sA}, s{sC}")
            A.i(f"v_add_u32 v70, s{sA}, v1\n v_add_u32 v69, s{sE}, v70\n v_add_u32 v71, s{sF}, v70")
            if e < 3:
                A.i(f"ds_write_b128 v69, {v(ACC,4)}\n ds_write_b128 v69, {v(ACC+4,4)} offset:8192")
            A.i(f"ds_write_b128 v70, {v(ACC+8,4)} offset:32768")
            A.i(f"ds_write_b128 v71, {v(ACC+12,4)}\n ds_write_b128 v71, {v(ACC+16,4)} offset:8192")
        A.i("s_waitcnt lgkmcnt(0)\n s_barrier")
        self.stamp("ffn2 done")
        A.i(f"s_mul_i32 s{sA}, s{sR}, 40960\n v_add_u32 v70, s{sA}, v1\n v_add_u32 v69, s{sE}, v70")
        for d in range(1, 8):
            A.i(f"s_add_u32 s{sA}, s{sW}, {d}\n s_and_b32 s{sA}, s{sA}, 7\n s_lshl_b32 s{sA}, s{sA}, 10\n v_add_u32 v71, s{sA}, v69")
            A.i(f"ds_read_b128 {v(72+8*(d-1),4)}, v71\n ds_read_b128 {v(76+8*(d-1),4)}, v71 offset:8192")
        A.i("v_and_b32 v44, 15, v0\n v_mul_u32_u24 v44, 1280, v44\n v_lshrrev_b32 v45, 4, v0\n v_lshlrev_b32 v45, 3, v45\n v_add_u32 v44, v44, v45")
        A.i(f"s_lshl_b32 s{sA}, s{sG}, 2\n s_add_u32 s{sA}, s{sA}, s{sR}\n s_mul_i32 s{sA}, s{sA}, {16*1280}\n s_mul_i32 s{sB}, s{sM}, 160\n s_add_u32 s{sA}, s{sA}, s{sB}")
        A.i(f"s_lshl_b32 s{sB}, s{sKH}, 6\n s_add_u32 s{sB}, s{sB}, s{sA}")
        for j in range(2):
            for p in range(2):
                A.i(f"v_lshlrev_b32 v{40+2*p}, 16, v{2+2*j+p}\n v_and_b32 v{41+2*p}, 0xffff0000, v{2+2*j+p}")
            for q in range(4):
                A.i(f"v_add_f32 v{ACC+4*j+q}, v{ACC+4*j+q}, v{40+q}")
        for d in range(7):
            A.i(f"s_waitcnt lgkmcnt({12-2*d})")
            for q in range(8):
                A.i(f"v_add_f32 v{ACC+q}, v{ACC+q}, v{72+8*d+q}")
        for i in range(4):
            A.i(f"v_cvt_pk_bf16_f32 v{40+i}, v{ACC+2*i}, v{ACC+2*i+1}")
        A.i(f"buffer_store_dwordx2 v[40:41], v44, s[{sOUT}:{sOUT+3}], s{sB} offen\n buffer_store_dwordx2 v[42:43], v44, s[{sOUT}:{sOUT+3}], s{sB} offen offset:32")
        A.i(f"s_cmp_lg_u32 s{sKH}, 0\n s_cbranch_scc1 L_fin")
        for d in range(8):
            A.i(f"ds_read_b128 {v(72+4*d,4)}, v70 offset:{32768+1024*d}")
        for p in range(2):
            A.i(f"v_lshlrev_b32 v{8+2*p}, 16, v{6+p}\n v_and_b32 v{9+2*p}, 0xffff0000, v{6+p}")
        for d in range(8):
            A.i(f"s_waitcnt lgkmcnt({7-d})")
            for q in range(4):
                A.i(f"v_add_f32 v{8+q}, v{8+q}, v{72+4*d+q}")
        A.i("v_cvt_pk_bf16_f32 v12, v8, v9\n v_cvt_pk_bf16_f32 v13, v10, v11")
        A.i(f"buffer_store_dwordx2 v[12:13], v44, s[{sOUT}:{sOUT+3}], s{sA} offen offset:128")
        A.label("L_fin")
        if self.prof:
            self.stamp("end")
            A.i("s_waitcnt vmcnt(0)")
            self.stamp("end drained")
            for idx in range(self.nstamp):
                A.i(f"v_writelane_b32 v8, s{STAMP_REGS[idx]}, {idx}")
            A.i(f"s_lshl_b32 s{sA}, s2, 3\n s_add_u32 s{sA}, s{sA}, s{sW}\n s_lshl_b32 s{sA}, s{sA}, 8\n s_add_u32 s{sA}, s{sA}, {PROF}\n v_lshlrev_b32 v9, 2, v0")
            A.i(f"buffer_store_dword v8, v9, s[{sWS}:{sWS+3}], s{sA} offen")

    def build(self):
        self.header()
        self.phase1()
        self.attention()
        self.tail()
        self.A.i("s_endpgm")
        self.slow_attention()
        self.footer()
        return self.A.text()

if __name__ == "__main__":
    import argparse
    ap = argparse.ArgumentParser()
    ap.add_argument("-o", default=f"cdna_kernels/{NAME}.s")
    ap.add_argument("--slow", action="store_true")
    ap.add_argument("--prof", action="store_true")
    args = ap.parse_args()
    g = Gen(prof=args.prof, force_slow=args.slow)
    txt = g.build()
    open(args.o, "w").write(txt)
    print("nops inserted:", g.A.nops, "lines:", txt.count("\n"), file=sys.stderr)
```
